```python
import torch

def _softmax(x, axis=-1):
    return torch.softmax(x, dim=axis)

def _gelu(x):
    return torch.nn.functional.gelu(x, approximate='tanh')

def _silu(x):
    return torch.nn.functional.silu(x)

def _sigmoid(x):
    return torch.sigmoid(x)

def _layernorm(x, axis=-1, eps=1e-05):
    m = x.mean(dim=axis, keepdim=True)
    v = x.var(dim=axis, keepdim=True, unbiased=False)
    return (x - m) / torch.sqrt(v + eps)

def _scatter_add(tgt, idx, src, axis=0):
    return tgt.clone().index_add_(axis, idx, src)

def _segment_sum(src, seg, n):
    out = torch.zeros((n,) + src.shape[1:], dtype=src.dtype)
    return out.index_add_(0, seg, src)

def _pad(x, pw):
    flat = tuple((v for pair in reversed(pw) for v in pair))
    return torch.nn.functional.pad(x, flat)
kernel_name = 'sequential_preLN__memory_aug_recurrent_mem_tr__geglu_ffn__prompt'

def setup_inputs():

    _w = lambda a: (lambda t: t.to(torch.bfloat16) if t.is_floating_point() else t)(torch.as_tensor(a))

    def _A_setup():
        B, S, Dm = (1, 2048, 512)
        H, Dh = (32, 128)
        M, seg = (8, 32)
        seg = min(seg, S)
        S = S // seg * seg
        return {'x': _w((lambda *s: torch.randn(*s, dtype=torch.bfloat16) * 0.05)(B, S, Dm)), 'mem0': _w((lambda *s: torch.randn(*s, dtype=torch.bfloat16) * 0.2)(B, M, Dm)), 'Wq': _w((lambda *s: torch.randn(*s, dtype=torch.bfloat16) * 1.6)(Dm, H, Dh) * Dm ** (-0.5)), 'Wk': _w((lambda *s: torch.randn(*s, dtype=torch.bfloat16) * 1.6)(Dm, H, Dh) * Dm ** (-0.5)), 'Wv': _w((lambda *s: torch.randn(*s, dtype=torch.bfloat16) * 0.2)(Dm, H, Dh) * Dm ** (-0.5)), 'Wo': _w((lambda *s: torch.randn(*s, dtype=torch.bfloat16) * 0.2)(H, Dh, Dm) * (H * Dh) ** (-0.5)), 'seg_len': seg}
    _A_in = _A_setup()

    def _B_setup():
        B, S, D, F = (1, 2048, 512, 1792)
        return {'x': _w((lambda *s: torch.randn(*s, dtype=torch.bfloat16) * 0.05)(B, S, D)), 'w_gate': _w((lambda *s: torch.randn(*s, dtype=torch.bfloat16) * 0.05)(D, F)), 'w_up': _w((lambda *s: torch.randn(*s, dtype=torch.bfloat16) * 0.05)(D, F)), 'w_down': _w((lambda *s: torch.randn(*s, dtype=torch.bfloat16) * 0.05)(F, D))}
    _B_in = _B_setup()
    return {'A_x': _A_in['x'], 'A_mem0': _A_in['mem0'], 'A_Wq': _A_in['Wq'], 'A_Wk': _A_in['Wk'], 'A_Wv': _A_in['Wv'], 'A_Wo': _A_in['Wo'], 'A_seg_len': _A_in['seg_len'], 'B_x': _B_in['x'], 'B_w_gate': _B_in['w_gate'], 'B_w_up': _B_in['w_up'], 'B_w_down': _B_in['w_down']}

def reference(A_x, A_mem0, A_Wq, A_Wk, A_Wv, A_Wo, A_seg_len, B_x, B_w_gate, B_w_up, B_w_down):

    def _A_ref(x, mem0, Wq, Wk, Wv, Wo, seg_len):
        B, S, Dm = x.shape
        H, Dh = (Wq.shape[1], Wq.shape[2])
        M = mem0.shape[1]
        scale = Dh ** (-0.5)
        n_seg = S // seg_len
        L = M + seg_len
        idx = torch.arange(L)
        mask = (idx[:, None] < M) | (idx[:, None] >= idx[None, :])
        mem = mem0
        outs = []
        for s in range(n_seg):
            xs = x[:, s * seg_len:(s + 1) * seg_len, :].clone()
            h = torch.concatenate([mem, xs], axis=1)
            q = torch.einsum('btd,dhe->bhte', h, Wq)
            k = torch.einsum('btd,dhe->bhte', h, Wk)
            v = torch.einsum('btd,dhe->bhte', h, Wv)
            scores = torch.einsum('bhqe,bhke->bhqk', q, k) * scale
            scores = torch.where(mask[None, None], scores, -1000000000.0)
            p = _softmax(scores, axis=-1)
            o = torch.einsum('bhqk,bhke->bhqe', p, v)
            o = torch.einsum('bhte,hed->btd', o, Wo)
            mem = o[:, :M, :].clone()
            outs.append(o[:, M:, :])
        return torch.concatenate(outs, axis=1)

    def _B_ref(x, w_gate, w_up, w_down):
        return _gelu(x @ w_gate) * (x @ w_up) @ w_down
    x = A_x
    h = x + _A_ref(_layernorm(x, axis=-1), A_mem0, A_Wq, A_Wk, A_Wv, A_Wo, A_seg_len)
    h2 = h + _B_ref(_layernorm(h, axis=-1), B_w_gate, B_w_up, B_w_down)
    return h2
```

```python
import sys

KNAME = "sequential_preLN__memory_aug_recurrent_mem_tr__geglu_ffn__prompt"

XN_P   = 0x0000000
WQKV_P = 0x0200000
WO_P   = 0x0E00000
WGU_P  = 0x1200000
WD_P   = 0x1580000
QB     = 0x1800000
KB     = 0x2800000
VT     = 0x3800000
KM     = 0x4800000
VMT    = 0x4C00000
OP     = 0x5000000
SLAB   = 0x6000000
HB     = 0x7000000
HN_P   = 0x7200000
ACT_P  = 0x7400000
M1     = 0x8000000
M2     = 0x8100000
WS_SIZE = 0x10000000

import struct
def f32(x):
    return "0x%08x" % struct.unpack("<I", struct.pack("<f", x))[0]

class Asm:
    def __init__(self):
        self.l = []
        self.uid = 0
    def __call__(self, s):
        for ln in s.strip().split("\n"):
            self.l.append("    " + ln.strip())
    def label(self, s):
        self.l.append(s + ":")
    def new(self, p="L"):
        self.uid += 1
        return "%s_%d" % (p, self.uid)
    def raw(self, s):
        self.l.append(s)

def vr(b, n=4):
    return "v[%d:%d]" % (b, b + n - 1)
def ar(b, n=4):
    return "a[%d:%d]" % (b, b + n - 1)
def sr(b, n=4):
    return "s[%d:%d]" % (b, b + n - 1)

kernels = []

def kstart(a, name):
    a.raw(".globl %s" % name)
    a.raw(".p2align 8")
    a.raw(".type %s,@function" % name)
    a.label(name)

def ws_srd(a, sb, sp):
    a("s_mov_b32 s%d, s%d\ns_mov_b32 s%d, s%d\ns_mov_b32 s%d, 0x%x\ns_mov_b32 s%d, 0x20000"
      % (sb, sp, sb + 1, sp + 1, sb + 2, WS_SIZE, sb + 3))

def mk_srd(a, sb, sp, size):
    a("s_mov_b32 s%d, s%d\ns_mov_b32 s%d, s%d\ns_mov_b32 s%d, 0x%x\ns_mov_b32 s%d, 0x20000"
      % (sb, sp, sb + 1, sp + 1, sb + 2, size, sb + 3))

def allreduce(a, op, v, t, vbp32, xors=(1, 2, 4, 8, 16), x32=True):
    for x in xors:
        a("ds_swizzle_b32 v%d, v%d offset:0x%x\ns_waitcnt lgkmcnt(0)\n%s v%d, v%d, v%d"
          % (t, v, (x << 10) | 0x1f, op, v, v, t))
    if x32:
        a("ds_bpermute_b32 v%d, v%d, v%d\ns_waitcnt lgkmcnt(0)\n%s v%d, v%d, v%d"
          % (t, vbp32, v, op, v, v, t))

def bfround(a, x, t):
    a("v_cvt_pk_bf16_f32 v%d, v%d, v%d\nv_lshlrev_b32 v%d, 16, v%d" % (t, x, x, x, t))

def ln_core(a, src, f, t, vbp32):
    if src is not None:
        for i in range(4):
            a("v_lshlrev_b32 v%d, 16, v%d\nv_and_b32 v%d, 0xffff0000, v%d" % (f + 2 * i, src + i, f + 2 * i + 1, src + i))
    s, q, m, u = t, t + 1, t + 2, t + 3
    a("v_add_f32 v%d, v%d, v%d" % (s, f, f + 1))
    for i in range(2, 8):
        a("v_add_f32 v%d, v%d, v%d" % (s, s, f + i))
    allreduce(a, "v_add_f32", s, u, vbp32)
    a("v_mul_f32 v%d, %s, v%d" % (m, f32(1.0 / 512), s))
    a("v_sub_f32 v%d, v%d, v%d\nv_mul_f32 v%d, v%d, v%d" % (u, f, m, q, u, u))
    for i in range(1, 8):
        a("v_sub_f32 v%d, v%d, v%d\nv_fmac_f32 v%d, v%d, v%d" % (u, f + i, m, q, u, u))
    allreduce(a, "v_add_f32", q, u, vbp32)
    a("v_mul_f32 v%d, %s, v%d" % (q, f32(1.0 / 512), q))
    bfround(a, m, u)
    bfround(a, q, u)
    a("v_add_f32 v%d, %s, v%d" % (q, f32(1e-5), q))
    bfround(a, q, u)
    a("v_sqrt_f32 v%d, v%d\ns_nop 1" % (q, q))
    bfround(a, q, u)
    a("v_rcp_f32 v%d, v%d\ns_nop 1" % (q, q))
    for i in range(8):
        a("v_sub_f32 v%d, v%d, v%d" % (f + i, f + i, m))
    for i in range(4):
        a("v_cvt_pk_bf16_f32 v%d, v%d, v%d" % (u, f + 2 * i, f + 2 * i + 1))
        a("v_lshlrev_b32 v%d, 16, v%d\nv_and_b32 v%d, 0xffff0000, v%d" % (f + 2 * i, u, f + 2 * i + 1, u))
        a("v_mul_f32 v%d, v%d, v%d\nv_mul_f32 v%d, v%d, v%d" % (f + 2 * i, f + 2 * i, q, f + 2 * i + 1, f + 2 * i + 1, q))
    dst = src if src is not None else f
    if src is None:
        for i in range(4):
            a("v_cvt_pk_bf16_f32 v%d, v%d, v%d" % (f + i, f + 2 * i, f + 2 * i + 1))
    else:
        for i in range(4):
            a("v_cvt_pk_bf16_f32 v%d, v%d, v%d" % (dst + i, f + 2 * i, f + 2 * i + 1))

def lane_setup(a):
    a("""v_and_b32 v1, 63, v0
v_lshrrev_b32 v2, 4, v1
v_and_b32 v3, 15, v1
v_lshrrev_b32 v4, 6, v0
s_nop 0
v_readfirstlane_b32 s3, v4""")

N_LN, N_PQ, N_PO, N_PG, N_PD, N_Z = 512, 768, 256, 224, 128, 65
PREP_WGS = N_LN + N_PQ + N_PO + N_PG + N_PD + N_Z

def gen_prep(a):
    name = "prep_kernel"
    kstart(a, name)
    a("""s_load_dwordx4 s[20:23], s[0:1], 0
s_load_dwordx8 s[24:31], s[0:1], 16
s_load_dwordx4 s[32:35], s[0:1], 64
s_load_dwordx2 s[36:37], s[0:1], 80
s_load_dwordx2 s[38:39], s[0:1], 104""")
    lane_setup(a)
    a("s_waitcnt lgkmcnt(0)")
    ws_srd(a, 12, 38)
    b0 = N_LN; b1 = b0 + N_PQ; b2 = b1 + N_PO; b3 = b2 + N_PG; b4 = b3 + N_PD; b5 = b4 + N_Z
    a("""s_cmp_lt_u32 s2, %d
s_cbranch_scc1 P_ln
s_cmp_lt_u32 s2, %d
s_cbranch_scc1 P_pq
s_cmp_lt_u32 s2, %d
s_cbranch_scc1 P_po
s_cmp_lt_u32 s2, %d
s_cbranch_scc1 P_pg
s_cmp_lt_u32 s2, %d
s_cbranch_scc1 P_pd
s_cmp_lt_u32 s2, %d
s_cbranch_scc1 P_zero
s_endpgm""" % (b0, b1, b2, b3, b4, b5))
    a.label("P_pq")
    a("""s_sub_u32 s4, s2, %d
s_lshr_b32 s5, s4, 8
s_and_b32 s6, s4, 255
s_cmp_eq_u32 s5, 0
s_cselect_b32 s8, s24, s26
s_cselect_b32 s9, s25, s27
s_cmp_eq_u32 s5, 2
s_cselect_b32 s8, s28, s8
s_cselect_b32 s9, s29, s9
s_mov_b32 s10, 0x400000
s_mov_b32 s11, 0x20000
s_mov_b32 s40, 8192
s_mov_b32 s41, 8
s_lshl_b32 s42, s6, 5
s_mov_b32 s43, 0
s_mov_b32 s44, 16
s_lshl_b32 s45, s4, 14
s_add_u32 s45, s45, 0x%x
s_mov_b32 s7, 0
s_branch P_pack""" % (b0, WQKV_P))
    a.label("P_po")
    a("""s_sub_u32 s4, s2, %d
s_lshr_b32 s5, s4, 3
s_and_b32 s6, s4, 7
s_mov_b32 s8, s30
s_mov_b32 s9, s31
s_mov_b32 s10, 0x400000
s_mov_b32 s11, 0x20000
s_mov_b32 s40, 1024
s_mov_b32 s41, 4
s_lshl_b32 s42, s5, 5
s_lshl_b32 s43, s6, 4
s_mov_b32 s44, 16
s_lshl_b32 s45, s5, 17
s_lshl_b32 s46, s6, 14
s_add_u32 s45, s45, s46
s_add_u32 s45, s45, 0x%x
s_mov_b32 s7, 1
s_branch P_pack""" % (b1, WO_P))
    a.label("P_pg")
    a("""s_sub_u32 s4, s2, %d
s_lshr_b32 s5, s4, 2
s_and_b32 s6, s4, 3
s_cmp_lt_u32 s6, 2
s_cselect_b32 s8, s32, s34
s_cselect_b32 s9, s33, s35
s_mov_b32 s10, 0x1c0000
s_mov_b32 s11, 0x20000
s_mov_b32 s40, 3584
s_mov_b32 s41, 8
s_lshl_b32 s42, s5, 6
s_and_b32 s46, s6, 1
s_lshl_b32 s46, s46, 5
s_add_u32 s42, s42, s46
s_mov_b32 s43, 0
s_mov_b32 s44, 16
s_lshl_b32 s45, s4, 14
s_add_u32 s45, s45, 0x%x
s_mov_b32 s7, 0
s_branch P_pack""" % (b2, WGU_P))
    a.label("P_pd")
    a("""s_sub_u32 s4, s2, %d
s_lshr_b32 s5, s4, 2
s_and_b32 s6, s4, 3
s_mov_b32 s8, s36
s_mov_b32 s9, s37
s_mov_b32 s10, 0x1c0000
s_mov_b32 s11, 0x20000
s_mov_b32 s40, 1024
s_mov_b32 s41, 4
s_lshl_b32 s42, s5, 5
s_mul_i32 s43, s6, 14
s_mov_b32 s44, 14
s_mul_i32 s45, s5, 56
s_add_u32 s45, s45, s43
s_lshl_b32 s45, s45, 10
s_add_u32 s45, s45, 0x%x
s_mov_b32 s7, 1
s_branch P_pack""" % (b3, WD_P))
    a.label("P_pack")
    for j in range(8):
        if j < 4:
            a("s_mul_i32 s%d, s40, %d" % (48 + j, j))
        else:
            a("s_cmp_eq_u32 s7, 1\ns_cselect_b32 s46, %d, %d\ns_mul_i32 s%d, s40, s46" % (12 + j, j, 48 + j))
    a("""s_mul_i32 s46, s41, s40
v_mul_lo_u32 v5, v2, s46
v_lshl_add_u32 v5, v3, 1, v5
v_add_u32 v5, s42, v5
v_lshlrev_b32 v6, 4, v1
s_mov_b32 s47, s3""")
    a.label("P_ploop")
    a("""s_cmp_ge_u32 s47, s44
s_cbranch_scc1 P_end
s_add_u32 s56, s43, s47
s_lshl_b32 s56, s56, 5
s_mul_i32 s56, s56, s40
v_add_u32 v7, s56, v5""")
    for j in range(8):
        a("buffer_load_ushort v%d, v7, s[8:11], s%d offen" % (16 + j, 48 + j))
    a("""s_lshl_b32 s57, s47, 10
s_add_u32 s57, s57, s45
s_waitcnt vmcnt(0)
v_lshl_or_b32 v8, v17, 16, v16
v_lshl_or_b32 v9, v19, 16, v18
v_lshl_or_b32 v10, v21, 16, v20
v_lshl_or_b32 v11, v23, 16, v22
buffer_store_dwordx4 v[8:11], v6, s[12:15], s57 offen
s_waitcnt vmcnt(0)
s_add_u32 s47, s47, 4
s_branch P_ploop""")
    a.label("P_zero")
    a("""s_sub_u32 s4, s2, %d
s_lshl_b32 s4, s4, 14
s_add_u32 s4, s4, 0x%x
v_lshlrev_b32 v6, 6, v0
v_mov_b32 v8, 0
v_mov_b32 v9, 0
v_mov_b32 v10, 0
v_mov_b32 v11, 0
buffer_store_dwordx4 v[8:11], v6, s[12:15], s4 offen
buffer_store_dwordx4 v[8:11], v6, s[12:15], s4 offen offset:16
buffer_store_dwordx4 v[8:11], v6, s[12:15], s4 offen offset:32
buffer_store_dwordx4 v[8:11], v6, s[12:15], s4 offen offset:48
s_endpgm""" % (b4, M1))
    a.label("P_ln")
    mk_srd(a, 8, 20, 0x200000)
    a("""s_lshl_b32 s4, s2, 2
s_add_u32 s4, s4, s3
s_lshl_b32 s5, s4, 10
v_lshlrev_b32 v6, 4, v1
buffer_load_dwordx4 v[8:11], v6, s[8:11], s5 offen
v_xor_b32 v5, 32, v1
v_lshlrev_b32 v5, 2, v5
s_waitcnt vmcnt(0)""")
    ln_core(a, 8, 16, 24, 5)
    a("""s_lshr_b32 s5, s4, 4
s_lshl_b32 s5, s5, 14
s_and_b32 s6, s4, 15
s_lshl_b32 s6, s6, 4
s_add_u32 s5, s5, s6
s_add_u32 s5, s5, 0x%x
v_lshrrev_b32 v6, 2, v1
v_lshlrev_b32 v6, 10, v6
v_and_b32 v7, 3, v1
v_lshl_add_u32 v6, v7, 8, v6
buffer_store_dwordx4 v[8:11], v6, s[12:15], s5 offen""" % XN_P)
    a.label("P_end")
    a("s_endpgm")
    kernels.append((name, 32, 32, 64))
    return name

def gen_gemm(a, name, nwg, KT, setup, epilogue):
    kstart(a, name)
    a("""s_load_dwordx2 s[38:39], s[0:1], 104
s_load_dwordx2 s[36:37], s[0:1], 88
s_cmp_ge_u32 s2, %d
s_cbranch_scc1 %s_end""" % (nwg, name))
    lane_setup(a)
    a("s_waitcnt lgkmcnt(0)")
    ws_srd(a, 12, 38)
    a("s_lshr_b32 s4, s3, 1\ns_and_b32 s5, s3, 1")
    setup(a)
    a("""v_lshlrev_b32 v4, 4, v1
s_lshl_b32 s6, s4, 2
s_mul_i32 s6, s6, s21
s_add_u32 s6, s6, s20
s_lshl_b32 s7, s5, 2
s_mul_i32 s7, s7, s23
s_add_u32 s7, s7, s22""")
    for i in range(4):
        a("v_add_u32 v%d, s6, v4\ns_add_u32 s6, s6, s21" % (8 + i))
    for j in range(4):
        a("v_add_u32 v%d, s7, v4\ns_add_u32 s7, s7, s23" % (12 + j))
    for r in range(80, 144):
        a("v_mov_b32 v%d, 0" % r)
    def loads(base, off):
        for i in range(8):
            a("buffer_load_dwordx4 %s, v%d, s[12:15], s24 offen%s" % (vr(base + 4 * i), 8 + i, (" offset:%d" % off) if off else ""))
    def mfmas(base):
        for i in range(4):
            for j in range(4):
                c = 80 + (i * 4 + j) * 4
                a("v_mfma_f32_16x16x32_bf16 %s, %s, %s, %s" % (vr(c), vr(base + 4 * i), vr(base + 16 + 4 * j), vr(c)))
    a("s_mov_b32 s24, 0")
    loads(16, 0)
    L = name + "_loop"
    a.label(L)
    loads(48, 1024)
    a("s_waitcnt vmcnt(8)")
    mfmas(16)
    a("s_add_u32 s24, s24, 2048")
    loads(16, 0)
    a("s_waitcnt vmcnt(8)")
    mfmas(48)
    a("s_cmp_lt_u32 s24, %d\ns_cbranch_scc1 %s\ns_waitcnt vmcnt(0)\ns_nop 7\ns_nop 7" % (KT * 1024, L))
    epilogue(a)
    a.label(name + "_end")
    a("s_endpgm")
    kernels.append((name, 168, 168, 64))
    return name

def acc(i, j):
    return 80 + (i * 4 + j) * 4

def qkv_setup(a):
    a("""s_and_b32 s8, s2, 15
s_lshr_b32 s9, s2, 4
s_lshr_b32 s10, s9, 5
s_lshl_b32 s16, s8, 17
s_add_u32 s16, s16, 0x%x
s_lshl_b32 s17, s9, 17
s_add_u32 s17, s17, 0x%x
s_mov_b32 s21, 16384
s_mov_b32 s23, 16384
s_cmp_lt_u32 s10, 2
s_cselect_b32 s20, s17, s16
s_cselect_b32 s22, s16, s17
s_and_b32 s11, s9, 31
s_lshl_b32 s11, s11, 7
s_lshl_b32 s16, s8, 7
s_mov_b32 s25, 0x%x
s_mov_b32 s17, 0x%x
s_cmp_eq_u32 s10, 0
s_cselect_b32 s25, s25, s17
s_lshl_b32 s17, s16, 13
s_add_u32 s25, s25, s17
s_lshl_b32 s17, s11, 1
s_add_u32 s25, s25, s17
s_lshl_b32 s17, s11, 12
s_add_u32 s18, s17, 0x%x
s_lshl_b32 s17, s16, 1
s_add_u32 s18, s18, s17
s_cmp_lt_u32 s10, 2
s_cselect_b32 s25, s25, s18
s_mov_b32 s17, 8192
s_cselect_b32 s26, s17, 4096""" % (XN_P, WQKV_P, QB, KB, VT))

def qkv_epi(a):
    a("""s_lshl_b32 s6, s5, 6
v_add_u32 v144, s6, v3
v_mul_lo_u32 v144, v144, s26
s_lshl_b32 s6, s4, 6
v_lshl_add_u32 v145, v2, 2, s6
v_lshl_add_u32 v144, v145, 1, v144
s_lshl_b32 s27, s26, 4""")
    for j in range(4):
        for i in range(4):
            c = acc(i, j)
            a("v_cvt_pk_bf16_f32 v%d, v%d, v%d\nv_cvt_pk_bf16_f32 v%d, v%d, v%d" % (146 + 2 * i, c, c + 1, 147 + 2 * i, c + 2, c + 3))
        for i in range(4):
            a("buffer_store_dwordx2 v[%d:%d], v144, s[12:15], s25 offen offset:%d" % (146 + 2 * i, 147 + 2 * i, i * 32))
        a("s_add_u32 s25, s25, s27\ns_nop 1")

def wo_setup(a):
    a("""s_and_b32 s8, s2, 15
s_lshr_b32 s9, s2, 4
s_and_b32 s10, s9, 3
s_lshr_b32 s11, s9, 2
s_lshl_b32 s16, s11, 15
s_lshl_b32 s20, s10, 20
s_add_u32 s20, s20, s16
s_add_u32 s20, s20, 0x%x
s_lshl_b32 s22, s8, 20
s_add_u32 s22, s22, s16
s_add_u32 s22, s22, 0x%x
s_mov_b32 s21, 131072
s_mov_b32 s23, 131072
s_lshl_b32 s25, s11, 22
s_lshl_b32 s16, s8, 18
s_add_u32 s25, s25, s16
s_lshl_b32 s16, s10, 9
s_add_u32 s25, s25, s16
s_add_u32 s25, s25, 0x%x""" % (WO_P, OP, SLAB))

def wo_epi(a):
    a("""s_lshl_b32 s6, s5, 6
v_add_u32 v144, s6, v3
v_lshlrev_b32 v144, 11, v144
s_lshl_b32 s6, s4, 6
v_lshl_add_u32 v145, v2, 2, s6
v_lshl_add_u32 v144, v145, 2, v144""")
    for j in range(4):
        for i in range(4):
            a("buffer_store_dwordx4 %s, v144, s[12:15], s25 offen offset:%d" % (vr(acc(i, j)), i * 64))
        a("s_add_u32 s25, s25, 32768")

def gu_setup(a):
    a("""s_and_b32 s8, s2, 15
s_lshr_b32 s9, s2, 4
s_lshl_b32 s20, s9, 17
s_add_u32 s20, s20, 0x%x
s_lshl_b32 s22, s8, 17
s_add_u32 s22, s22, 0x%x
s_mov_b32 s21, 16384
s_mov_b32 s23, 16384
s_lshl_b32 s16, s8, 3
s_lshl_b32 s17, s5, 2
s_add_u32 s16, s16, s17
s_mul_i32 s16, s16, 56
s_lshl_b32 s17, s9, 1
s_add_u32 s17, s17, s4
s_add_u32 s16, s16, s17
s_lshl_b32 s25, s16, 10
s_add_u32 s25, s25, 0x%x""" % (WGU_P, HN_P, ACT_P))

def gelu_mul(a, g, u, t):
    t0, t1, t2 = t, t + 1, t + 2
    bfround(a, g, t0)
    bfround(a, u, t0)
    a("""v_mul_f32 v%d, v%d, v%d
v_mul_f32 v%d, %s, v%d
v_add_f32 v%d, 1.0, v%d
v_mul_f32 v%d, v%d, v%d""" % (t0, g, g, t0, f32(0.044715), t0, t0, t0, t0, t0, g))
    c = 2.0 * 0.7978845608028654 * 1.4426950408889634
    a("""v_mul_f32 v%d, %s, v%d
v_min_f32 v%d, %s, v%d
v_exp_f32 v%d, v%d
s_nop 1
v_add_f32 v%d, 1.0, v%d
v_rcp_f32 v%d, v%d
s_nop 1
v_fma_f32 v%d, v%d, -1.0, 1.0
v_mul_f32 v%d, v%d, v%d""" % (t0, f32(c), t0, t0, f32(126.0), t0, t1, t0, t1, t1, t1, t1, t1, t1, g, g, t1))
    bfround(a, g, t0)
    a("v_mul_f32 v%d, v%d, v%d" % (g, g, u))

def gu_epi(a):
    a("v_lshlrev_b32 v144, 4, v1")
    for j in range(4):
        for i in range(2):
            for r in range(4):
                gelu_mul(a, acc(i, j) + r, acc(i + 2, j) + r, 150)
        for i in range(2):
            c = acc(i, j)
            a("v_cvt_pk_bf16_f32 v%d, v%d, v%d\nv_cvt_pk_bf16_f32 v%d, v%d, v%d" % (156 + 2 * i, c, c + 1, 157 + 2 * i, c + 2, c + 3))
        a("buffer_store_dwordx4 v[156:159], v144, s[12:15], s25 offen\ns_add_u32 s25, s25, %d\ns_nop 1" % (56 * 1024))

def dn_setup(a):
    a("""s_and_b32 s8, s2, 15
s_lshr_b32 s9, s2, 4
s_mul_i32 s20, s9, %d
s_add_u32 s20, s20, 0x%x
s_mul_i32 s22, s8, %d
s_add_u32 s22, s22, 0x%x
s_mov_b32 s21, %d
s_mov_b32 s23, %d
s_lshl_b32 s25, s8, 17
s_lshl_b32 s16, s9, 8
s_add_u32 s25, s25, s16
s_mov_b32 s16, s36
s_mov_b32 s17, s37
s_mov_b32 s18, 0x200000
s_mov_b32 s19, 0x20000""" % (8 * 56 * 1024, WD_P, 8 * 56 * 1024, ACT_P, 56 * 1024, 56 * 1024))

def dn_epi(a):
    a("""s_lshl_b32 s6, s5, 6
v_add_u32 v144, s6, v3
v_lshlrev_b32 v144, 10, v144
s_lshl_b32 s6, s4, 6
v_lshl_add_u32 v145, v2, 2, s6
v_lshl_add_u32 v144, v145, 1, v144
s_add_u32 s26, s25, 0x%x""" % HB)
    for j in range(4):
        for i in range(4):
            a("buffer_load_dwordx2 v[%d:%d], v144, s[12:15], s26 offen offset:%d" % (146 + 2 * i, 147 + 2 * i, i * 32))
        a("s_waitcnt vmcnt(0)")
        for i in range(4):
            c = acc(i, j)
            for r in range(4):
                bfround(a, c + r, 160)
                src = 146 + 2 * i + r // 2
                if r & 1:
                    a("v_and_b32 v161, 0xffff0000, v%d" % src)
                else:
                    a("v_lshlrev_b32 v161, 16, v%d" % src)
                a("v_add_f32 v%d, v%d, v161" % (c + r, c + r))
            a("v_cvt_pk_bf16_f32 v%d, v%d, v%d\nv_cvt_pk_bf16_f32 v%d, v%d, v%d" % (146 + 2 * i, c, c + 1, 147 + 2 * i, c + 2, c + 3))
        for i in range(4):
            a("buffer_store_dwordx2 v[%d:%d], v144, s[16:19], s25 offen offset:%d" % (146 + 2 * i, 147 + 2 * i, i * 32))
        a("s_add_u32 s25, s25, 16384\ns_add_u32 s26, s26, 16384\ns_waitcnt vmcnt(0)")

SCALE = 128 ** -0.5
LOG2E = 1.4426950408889634

def attn_softmax(a, S, masks, t, vbp32, P):
    t0, t1, t2 = t, t + 1, t + 2
    for k in range(12):
        x = S + k
        bfround(a, x, t0)
        a("v_mul_f32 v%d, %s, v%d" % (x, f32(SCALE), x))
        bfround(a, x, t0)
        m = masks(k // 4, k % 4)
        if m:
            a(m + "\ns_nop 1\nv_mov_b32 v%d, %s\nv_cndmask_b32 v%d, v%d, v%d, vcc" % (t0, f32(-1e9), x, t0, x))
    a("v_max_f32 v%d, v%d, v%d" % (t1, S, S + 1))
    for k in range(2, 12):
        a("v_max_f32 v%d, v%d, v%d" % (t1, t1, S + k))
    allreduce(a, "v_max_f32", t1, t0, vbp32, xors=(16,))
    for k in range(12):
        a("v_sub_f32 v%d, v%d, v%d\nv_mul_f32 v%d, %s, v%d\nv_exp_f32 v%d, v%d" % (S + k, S + k, t1, S + k, f32(LOG2E), S + k, S + k, S + k))
    a("s_nop 1\nv_add_f32 v%d, v%d, v%d" % (t2, S, S + 1))
    for k in range(2, 12):
        a("v_add_f32 v%d, v%d, v%d" % (t2, t2, S + k))
    allreduce(a, "v_add_f32", t2, t0, vbp32, xors=(16,))
    a("v_rcp_f32 v%d, v%d\ns_nop 1" % (t2, t2))
    for k in range(12):
        a("v_mul_f32 v%d, v%d, v%d" % (S + k, S + k, t2))
    for k in range(6):
        a("v_cvt_pk_bf16_f32 v%d, v%d, v%d" % (P + k, S + 2 * k, S + 2 * k + 1))
    a("v_mov_b32 v%d, 0\nv_mov_b32 v%d, 0\ns_nop 1" % (P + 6, P + 7))

def gen_attn(a):
    name = "attn_kernel"
    kstart(a, name)
    a("""s_load_dwordx2 s[38:39], s[0:1], 104
s_cmp_ge_u32 s2, 512
s_cbranch_scc1 attn_end""")
    lane_setup(a)
    a("s_waitcnt lgkmcnt(0)")
    ws_srd(a, 12, 38)
    a("""s_lshl_b32 s4, s2, 2
s_add_u32 s4, s4, s3
s_lshr_b32 s5, s4, 5
s_and_b32 s6, s4, 31
v_xor_b32 v5, 32, v1
v_lshlrev_b32 v5, 2, v5""")
    KX, KMf, Q, VX, VM, S, P, O = 16, 48, 64, 96, 128, 160, 172, 180
    a("""v_lshlrev_b32 v6, 13, v3
v_lshl_add_u32 v6, v2, 4, v6
s_lshl_b32 s7, s5, 18
s_lshl_b32 s8, s6, 8
s_add_u32 s7, s7, s8
s_add_u32 s9, s7, 0x%x
s_add_u32 s10, s7, 0x%x
s_add_u32 s16, s9, 0x20000
s_add_u32 s17, s10, 0x20000""" % (KB, QB))
    for ks in range(4):
        a("buffer_load_dwordx4 %s, v6, s[12:15], s9 offen offset:%d" % (vr(KX + ks * 4), ks * 64))
        a("buffer_load_dwordx4 %s, v6, s[12:15], s16 offen offset:%d" % (vr(KX + 16 + ks * 4), ks * 64))
        a("buffer_load_dwordx4 %s, v6, s[12:15], s10 offen offset:%d" % (vr(Q + ks * 4), ks * 64))
        a("buffer_load_dwordx4 %s, v6, s[12:15], s17 offen offset:%d" % (vr(Q + 16 + ks * 4), ks * 64))
    a("""v_and_b32 v7, 7, v1
v_lshlrev_b32 v7, 13, v7
v_lshl_add_u32 v7, v2, 4, v7
s_lshl_b32 s18, s5, 16
s_add_u32 s18, s18, s8
s_add_u32 s18, s18, 0x%x""" % KM)
    for ks in range(4):
        a("buffer_load_dwordx4 %s, v7, s[12:15], s18 offen offset:%d" % (vr(KMf + ks * 4), ks * 64))
    a("""v_lshlrev_b32 v8, 12, v3
v_lshl_add_u32 v8, v2, 3, v8
s_lshl_b32 s19, s6, 19
s_lshl_b32 s20, s5, 6
s_add_u32 s19, s19, s20
s_add_u32 s19, s19, 0x%x""" % VT)
    for et in range(8):
        a("buffer_load_dwordx2 v[%d:%d], v8, s[12:15], s19 offen" % (VX + et * 4, VX + et * 4 + 1))
        a("buffer_load_dwordx2 v[%d:%d], v8, s[12:15], s19 offen offset:32" % (VX + et * 4 + 2, VX + et * 4 + 3))
        a("s_add_u32 s19, s19, 65536")
    a("""v_lshlrev_b32 v9, 4, v3
v_lshl_add_u32 v9, v2, 3, v9
v_and_b32 v10, 1, v2
v_lshlrev_b32 v9, 4, v3
v_lshl_add_u32 v9, v10, 3, v9
s_lshl_b32 s21, s5, 16
s_lshl_b32 s22, s6, 11
s_add_u32 s21, s21, s22
s_add_u32 s21, s21, 0x%x""" % VMT)
    for et in range(8):
        a("buffer_load_dwordx2 v[%d:%d], v9, s[12:15], s21 offen offset:%d" % (VM + et * 4, VM + et * 4 + 1, et * 256))
        a("v_mov_b32 v%d, 0\nv_mov_b32 v%d, 0" % (VM + et * 4 + 2, VM + et * 4 + 3))
    a("""v_lshlrev_b32 v11, 4, v1
s_lshl_b32 s23, s5, 18
s_lshl_b32 s24, s6, 12
s_add_u32 s23, s23, s24
s_add_u32 s23, s23, 0x%x
v_cmp_gt_u32 vcc, 2, v2
s_waitcnt vmcnt(0)""" % OP)
    for et in range(8):
        a("v_cndmask_b32 v%d, 0, v%d, vcc\nv_cndmask_b32 v%d, 0, v%d, vcc" % (VM + et * 4, VM + et * 4, VM + et * 4 + 1, VM + et * 4 + 1))
    for qt in range(2):
        a("v_lshlrev_b32 v13, 2, v2\nv_sub_u32 v12, v3, v13\nv_add_u32 v12, %d, v12" % (16 * qt))
        for t3 in range(3):
            for ks in range(4):
                kf = (KX + t3 * 16 + ks * 4) if t3 < 2 else (KMf + ks * 4)
                a("v_mfma_f32_16x16x32_bf16 %s, %s, %s, %s" % (vr(S + t3 * 4), vr(kf), vr(Q + qt * 16 + ks * 4), "0" if ks == 0 else vr(S + t3 * 4)))
        a("s_nop 7\ns_nop 3")
        def masks(tile, r):
            if tile < 2:
                return "v_cmp_le_i32 vcc, %d, v12" % (16 * tile + r)
            return "v_cmp_gt_u32 vcc, 2, v2"
        attn_softmax(a, S, masks, 212, 5, P)
        for et in range(8):
            a("v_mfma_f32_16x16x32_bf16 %s, %s, %s, 0" % (vr(O + et * 4), vr(VX + et * 4), vr(P)))
        for et in range(8):
            a("v_mfma_f32_16x16x32_bf16 %s, %s, %s, %s" % (vr(O + et * 4), vr(VM + et * 4), vr(P + 4), vr(O + et * 4)))
        a("s_nop 7\ns_nop 3")
        for i in range(4):
            for h2 in range(2):
                c = O + (2 * i + h2) * 4
                a("v_cvt_pk_bf16_f32 v%d, v%d, v%d\nv_cvt_pk_bf16_f32 v%d, v%d, v%d" % (S + 2 * h2, c, c + 1, S + 2 * h2 + 1, c + 2, c + 3))
            a("buffer_store_dwordx4 %s, v11, s[12:15], s23 offen offset:%d\ns_nop 1" % (vr(S), i * 1024))
        a("s_add_u32 s23, s23, 131072")
    a.label("attn_end")
    a("s_endpgm")
    kernels.append((name, 216, 216, 64))
    return name

def gen_ln2(a):
    name = "ln2_kernel"
    kstart(a, name)
    a("""s_load_dwordx2 s[38:39], s[0:1], 104
s_load_dwordx2 s[20:21], s[0:1], 0
s_cmp_ge_u32 s2, 512
s_cbranch_scc1 ln2_end""")
    lane_setup(a)
    a("s_waitcnt lgkmcnt(0)")
    ws_srd(a, 12, 38)
    mk_srd(a, 8, 20, 0x200000)
    a("""s_lshl_b32 s4, s2, 2
s_add_u32 s4, s4, s3
s_lshl_b32 s5, s4, 10
v_lshlrev_b32 v6, 4, v1
buffer_load_dwordx4 v[8:11], v6, s[8:11], s5 offen
v_lshlrev_b32 v7, 5, v1
s_lshl_b32 s6, s4, 11
s_add_u32 s6, s6, 0x%x
v_xor_b32 v5, 32, v1
v_lshlrev_b32 v5, 2, v5""" % SLAB)
    for sp in range(4):
        a("buffer_load_dwordx4 %s, v7, s[12:15], s6 offen\nbuffer_load_dwordx4 %s, v7, s[12:15], s6 offen offset:16\ns_add_u32 s6, s6, 0x400000"
          % (vr(32 + sp * 8), vr(36 + sp * 8)))
    a("s_waitcnt vmcnt(0)")
    for i in range(8):
        a("v_add_f32 v%d, v%d, v%d\nv_add_f32 v%d, v%d, v%d\nv_add_f32 v%d, v%d, v%d"
          % (32 + i, 32 + i, 40 + i, 32 + i, 32 + i, 48 + i, 32 + i, 32 + i, 56 + i))
        bfround(a, 32 + i, 24)
        if i & 1:
            a("v_and_b32 v25, 0xffff0000, v%d" % (8 + i // 2))
        else:
            a("v_lshlrev_b32 v25, 16, v%d" % (8 + i // 2))
        a("v_add_f32 v%d, v%d, v25" % (16 + i, 32 + i))
    for i in range(4):
        a("v_cvt_pk_bf16_f32 v%d, v%d, v%d" % (8 + i, 16 + 2 * i, 17 + 2 * i))
    a("s_add_u32 s7, s5, 0x%x\nbuffer_store_dwordx4 v[8:11], v6, s[12:15], s7 offen\ns_nop 1" % HB)
    a("v_mov_b32 v12, v8\nv_mov_b32 v13, v9\nv_mov_b32 v14, v10\nv_mov_b32 v15, v11")
    ln_core(a, 12, 16, 24, 5)
    a("""s_lshr_b32 s5, s4, 4
s_lshl_b32 s5, s5, 14
s_and_b32 s6, s4, 15
s_lshl_b32 s6, s6, 4
s_add_u32 s5, s5, s6
s_add_u32 s5, s5, 0x%x
v_lshrrev_b32 v6, 2, v1
v_lshlrev_b32 v6, 10, v6
v_and_b32 v7, 3, v1
v_lshl_add_u32 v6, v7, 8, v6
buffer_store_dwordx4 v[12:15], v6, s[12:15], s5 offen""" % HN_P)
    a.label("ln2_end")
    a("s_endpgm")
    kernels.append((name, 64, 64, 64))
    return name

L_WO = 20480
L_MEM = 0
L_Q = L_MEM + 8320
L_K = L_Q + 2176
L_VT = L_K + 2176
L_RED = L_VT + 4096
L_END = L_RED + 2048
REC_LDS = 20480 + 131072
SPIN_MAX = 1 << 22

def wreg(t, kt):
    if t < 4:
        return ar((t * 16 + kt) * 4)
    return vr(128 + ((t - 4) * 16 + kt) * 4)

def gen_rec(a):
    name = "rec_kernel"
    kstart(a, name)
    a("""s_load_dwordx2 s[38:39], s[0:1], 104
s_load_dwordx2 s[20:21], s[0:1], 8
s_cmp_ge_u32 s2, 32
s_cbranch_scc1 rec_end""")
    lane_setup(a)
    a("s_waitcnt lgkmcnt(0)")
    ws_srd(a, 12, 38)
    mk_srd(a, 8, 20, 8192)
    KX, VX, ACC, MF = 20, 52, 84, 108
    a("""v_lshlrev_b32 v4, 4, v1
v_xor_b32 v5, 32, v1
v_lshlrev_b32 v5, 2, v5
v_and_b32 v19, 7, v1""")
    a("""v_lshlrev_b32 v6, 13, v3
v_lshl_add_u32 v6, v2, 4, v6
v_lshlrev_b32 v7, 12, v3
v_lshl_add_u32 v7, v2, 3, v7
v_mul_u32_u24 v8, 272, v19
v_lshl_add_u32 v8, v2, 4, v8
v_lshlrev_b32 v9, 5, v3
v_lshl_add_u32 v9, v2, 3, v9
v_add_u32 v9, %d, v9
v_mul_u32_u24 v10, 1040, v19
v_lshl_add_u32 v10, v2, 4, v10
v_add_u32 v10, %d, v10""" % (L_VT, L_MEM))
    a("""v_mul_u32_u24 v11, 272, v3
v_lshl_add_u32 v11, v2, 3, v11
s_lshl_b32 s4, s3, 6
v_add_u32 v11, s4, v11""")
    a("""v_lshlrev_b32 v12, 5, v3
v_lshl_add_u32 v12, v2, 3, v12
s_lshl_b32 s4, s3, 10
s_add_u32 s4, s4, %d
v_add_u32 v12, s4, v12""" % L_VT)
    a("""v_lshlrev_b32 v13, 13, v3
v_lshl_add_u32 v13, v2, 3, v13
s_lshl_b32 s4, s2, 8
s_lshl_b32 s5, s3, 6
s_add_u32 s4, s4, s5
v_add_u32 v13, s4, v13
v_lshlrev_b32 v14, 4, v3
v_lshl_add_u32 v14, v2, 3, v14
s_lshl_b32 s4, s4, 3
v_add_u32 v14, s4, v14""")
    a("""v_lshlrev_b32 v15, 6, v3
v_lshl_add_u32 v15, v2, 5, v15
s_lshl_b32 s4, s3, 18
s_lshl_b32 s5, s2, 10
s_add_u32 s4, s4, s5
v_add_u32 v15, s4, v15
s_lshl_b32 s4, s2, 15
s_lshl_b32 s5, s3, 13
s_add_u32 s4, s4, s5
v_add_u32 v16, s4, v4
v_lshlrev_b32 v17, 6, v0
v_lshlrev_b32 v18, 2, v0
v_add_u32 v18, %d, v18""" % L_MEM)
    for r in (122, 123, 126, 127):
        a("v_mov_b32 v%d, 0" % r)
    a("""v_cmp_gt_u32 s[30:31], 8, v3
v_cmp_gt_u32 s[32:33], 32, v1""")
    a("""v_mov_b32 v84, 0
v_mov_b32 v85, 0
v_mov_b32 v86, 0
v_mov_b32 v87, 0
v_lshlrev_b32 v88, 4, v0
v_add_u32 v88, %d, v88
ds_write_b128 v88, v[84:87]""" % L_VT)
    a("""s_lshl_b32 s4, s2, 17
s_lshl_b32 s5, s3, 15
s_add_u32 s4, s4, s5
v_add_u32 v88, s4, v4""")
    for t in range(6):
        reg = t // 2
        for kt in range(16):
            off = WQKV_P + reg * 256 * 16384 + ((t & 1) * 16 + kt) * 1024
            a("s_mov_b32 s4, 0x%x\nbuffer_load_dwordx4 %s, v88, s[12:15], s4 offen" % (off, wreg(t, kt)))
    a("""s_lshl_b32 s4, s3, 20
s_lshl_b32 s5, s2, 12
s_add_u32 s4, s4, s5
s_add_u32 s4, s4, 0x%x
s_lshl_b32 s5, s3, 15
s_add_u32 s5, s5, %d
v_add_u32 v88, s5, v4""" % (WO_P, L_WO))
    for i in range(8):
        for k in range(4):
            a("buffer_load_dwordx4 %s, v4, s[12:15], s4 offen offset:%d" % (vr(20 + k * 4), k * 1024))
        a("s_add_u32 s4, s4, 131072\ns_waitcnt vmcnt(0)")
        for k in range(4):
            a("ds_write_b128 v88, %s offset:%d" % (vr(20 + k * 4), i * 4096 + k * 1024))
        a("s_waitcnt lgkmcnt(0)")
    a("s_mov_b32 s16, 0")
    a.label("R_loop")
    a("""s_lshl_b32 s4, s16, 18
s_lshl_b32 s5, s2, 8
s_add_u32 s4, s4, s5
s_add_u32 s4, s4, 0x%x
s_add_u32 s5, s4, 0x20000""" % KB)
    for ks in range(4):
        a("buffer_load_dwordx4 %s, v6, s[12:15], s4 offen offset:%d" % (vr(KX + ks * 4), ks * 64))
        a("buffer_load_dwordx4 %s, v6, s[12:15], s5 offen offset:%d" % (vr(KX + 16 + ks * 4), ks * 64))
    a("""s_lshl_b32 s4, s2, 19
s_lshl_b32 s5, s16, 6
s_add_u32 s4, s4, s5
s_add_u32 s4, s4, 0x%x""" % VT)
    for et in range(8):
        a("buffer_load_dwordx2 v[%d:%d], v7, s[12:15], s4 offen" % (VX + et * 4, VX + et * 4 + 1))
        a("buffer_load_dwordx2 v[%d:%d], v7, s[12:15], s4 offen offset:32" % (VX + et * 4 + 2, VX + et * 4 + 3))
        a("s_add_u32 s4, s4, 65536")
    a("s_cmp_lg_u32 s16, 0\ns_cbranch_scc1 R_poll2")
    a("""v_lshlrev_b32 v84, 5, v0
buffer_load_dwordx4 v[88:91], v84, s[8:11], 0 offen
buffer_load_dwordx4 v[92:95], v84, s[8:11], 0 offen offset:16
v_lshrrev_b32 v85, 5, v0
v_mul_u32_u24 v85, 1040, v85
v_and_b32 v86, 31, v0
v_lshl_add_u32 v85, v86, 5, v85
v_add_u32 v85, %d, v85
s_waitcnt vmcnt(0)
ds_write_b128 v85, v[88:91]
ds_write_b128 v85, v[92:95] offset:16
s_branch R_memdone""" % L_MEM)
    a.label("R_poll2")
    a("s_mov_b32 s17, 0\ns_mov_b32 s18, 0x%x" % M2)
    a.label("R_p2loop")
    for i in range(4):
        a("buffer_load_dwordx4 %s, v17, s[12:15], s18 offen offset:%d sc1" % (vr(84 + 4 * i), 16 * i))
    a("s_waitcnt vmcnt(0)")
    a("v_xor_b32 v100, s16, v85")
    for i in range(1, 8):
        a("v_xor_b32 v101, s16, v%d\nv_or_b32 v100, v100, v101" % (85 + 2 * i))
    a("""v_cmp_ne_u32 vcc, 0, v100
s_add_u32 s17, s17, 1
s_cmp_ge_u32 s17, %d
s_cbranch_scc1 R_p2done
s_cbranch_vccnz R_p2loop""" % SPIN_MAX)
    a.label("R_p2done")
    a("s_mov_b32 s19, 0xffff0000")
    for rp in range(4):
        A, B = 84 + 2 * rp, 92 + 2 * rp
        a("""v_and_b32 v100, 0xffff, v%d
v_lshl_or_b32 v100, v%d, 16, v100
v_lshrrev_b32 v101, 16, v%d
v_and_or_b32 v101, v%d, s19, v101
ds_write_b32 v18, v100 offset:%d
ds_write_b32 v18, v101 offset:%d""" % (A, B, A, B, (2 * rp) * 1040, (2 * rp + 1) * 1040))
    a.label("R_memdone")
    a("s_waitcnt lgkmcnt(0)\ns_barrier")
    a("ds_read_b128 %s, v10" % vr(MF))
    for kt in range(16):
        cur = MF + (kt & 1) * 4
        nxt = MF + ((kt + 1) & 1) * 4
        if kt < 15:
            a("ds_read_b128 %s, v10 offset:%d\ns_waitcnt lgkmcnt(1)" % (vr(nxt), (kt + 1) * 64))
        else:
            a("s_waitcnt lgkmcnt(0)")
        for t in range(6):
            c = vr(ACC + t * 4)
            cin = "0" if kt == 0 else c
            if t < 4:
                a("v_mfma_f32_16x16x32_bf16 %s, %s, %s, %s" % (c, wreg(t, kt), vr(cur), cin))
            else:
                a("v_mfma_f32_16x16x32_bf16 %s, %s, %s, %s" % (c, vr(cur), wreg(t, kt), cin))
    a("s_nop 7\ns_nop 3")
    a("""s_lshl_b32 s4, s16, 16
s_add_u32 s5, s4, 0x%x
s_add_u32 s4, s4, 0x%x""" % (VMT, KM))
    for t in range(6):
        c = ACC + t * 4
        a("v_cvt_pk_bf16_f32 v%d, v%d, v%d\nv_cvt_pk_bf16_f32 v%d, v%d, v%d" % (c, c, c + 1, c + 1, c + 2, c + 3))
    a("s_mov_b64 exec, s[30:31]")
    for t in range(4):
        c = ACC + t * 4
        base = L_Q if t < 2 else L_K
        a("ds_write_b64 v11, v[%d:%d] offset:%d" % (c, c + 1, base + (t & 1) * 32))
        if t >= 2:
            a("buffer_store_dwordx2 v[%d:%d], v13, s[12:15], s4 offen offset:%d" % (c, c + 1, (t & 1) * 32))
    a("s_mov_b64 exec, s[32:33]")
    for t in range(4, 6):
        c = ACC + t * 4
        a("ds_write_b64 v12, v[%d:%d] offset:%d" % (c, c + 1, (t & 1) * 512))
        a("buffer_store_dwordx2 v[%d:%d], v14, s[12:15], s5 offen offset:%d" % (c, c + 1, (t & 1) * 256))
    a("s_mov_b64 exec, -1\ns_waitcnt lgkmcnt(0)\ns_barrier")
    a("s_cmp_eq_u32 s16, 63\ns_cbranch_scc1 rec_end")
    S, P, O = 84, 112, 20
    a("s_waitcnt vmcnt(0)")
    for ks in range(4):
        a("ds_read_b128 v[96:99], v8 offset:%d\nds_read_b128 v[100:103], v8 offset:%d\ns_waitcnt lgkmcnt(0)" % (L_Q + ks * 64, L_K + ks * 64))
        for t3 in range(3):
            kf = vr(KX + t3 * 16 + ks * 4) if t3 < 2 else "v[100:103]"
            a("v_mfma_f32_16x16x32_bf16 %s, %s, v[96:99], %s" % (vr(S + t3 * 4), kf, "0" if ks == 0 else vr(S + t3 * 4)))
        a("s_nop 3")
    a("s_nop 7\ns_nop 3")
    def masks(tile, r):
        if tile < 2:
            return None
        return "v_cmp_gt_u32 vcc, 2, v2"
    attn_softmax(a, S, masks, 104, 5, P)
    for et in range(8):
        a("v_mfma_f32_16x16x32_bf16 %s, %s, %s, 0" % (vr(O + et * 4), vr(VX + et * 4), vr(P)))
    for et in range(8):
        vm = 120 + (et & 1) * 4
        a("ds_read_b64 v[%d:%d], v9 offset:%d\ns_waitcnt lgkmcnt(0)" % (vm, vm + 1, et * 512))
        a("v_mfma_f32_16x16x32_bf16 %s, %s, %s, %s" % (vr(O + et * 4), vr(vm), vr(P + 4), vr(O + et * 4)))
    a("s_nop 7\ns_nop 3")
    OF = 84
    for i in range(4):
        for h2 in range(2):
            c = O + (2 * i + h2) * 4
            a("v_cvt_pk_bf16_f32 v%d, v%d, v%d\nv_cvt_pk_bf16_f32 v%d, v%d, v%d" % (OF + 4 * i + 2 * h2, c, c + 1, OF + 4 * i + 2 * h2 + 1, c + 2, c + 3))
    a("s_nop 1")
    CA = 52
    a("s_lshl_b32 s4, s3, 15\ns_add_u32 s4, s4, %d\nv_add_u32 v108, s4, v4" % L_WO)
    for i in range(8):
        for k in range(4):
            wb = 100 + (k & 1) * 4
            a("ds_read_b128 %s, v108 offset:%d\ns_waitcnt lgkmcnt(0)" % (vr(wb), i * 4096 + k * 1024))
            a("v_mfma_f32_16x16x32_bf16 %s, %s, %s, %s" % (vr(CA + i * 4), vr(OF + k * 4), vr(wb), "0" if k == 0 else vr(CA + i * 4)))
    a("s_nop 7\ns_nop 3")
    a("s_add_u32 s17, s16, 1\ns_mov_b32 s18, 0x%x\ns_mov_b64 exec, s[32:33]" % M1)
    for i in range(8):
        c = CA + i * 4
        q = 20 + (i & 3) * 8
        a("""v_mov_b32 v%d, v%d
v_mov_b32 v%d, s17
v_mov_b32 v%d, v%d
v_mov_b32 v%d, s17
v_mov_b32 v%d, v%d
v_mov_b32 v%d, s17
v_mov_b32 v%d, v%d
v_mov_b32 v%d, s17""" % (q, c, q + 1, q + 2, c + 1, q + 3, q + 4, c + 2, q + 5, q + 6, c + 3, q + 7))
        a("buffer_store_dwordx4 %s, v15, s[12:15], s18 offen sc1\nbuffer_store_dwordx4 %s, v15, s[12:15], s18 offen offset:16 sc1\ns_add_u32 s18, s18, 32768"
          % (vr(q), vr(q + 4)))
        if i == 3:
            a("s_waitcnt vmcnt(0)")
    a("s_mov_b64 exec, -1\ns_waitcnt vmcnt(0)")
    a("s_mov_b32 s19, 0\ns_mov_b32 s18, 0x%x\ns_add_u32 s22, s18, 4096" % M1)
    a.label("R_p1loop")
    for i in range(8):
        a("buffer_load_dwordx4 %s, v16, s[12:15], s%d offen offset:%d sc1" % (vr(20 + 4 * i), 18 if i < 4 else 22, (i & 3) * 1024))
    a("s_waitcnt vmcnt(0)")
    a("v_xor_b32 v100, s17, v21")
    for i in range(1, 16):
        a("v_xor_b32 v101, s17, v%d\nv_or_b32 v100, v100, v101" % (21 + 2 * i))
    a("""v_cmp_ne_u32 vcc, 0, v100
s_add_u32 s19, s19, 1
s_cmp_ge_u32 s19, %d
s_cbranch_scc1 R_p1done
s_cbranch_vccnz R_p1loop""" % SPIN_MAX)
    a.label("R_p1done")
    a("v_add_f32 v84, v20, v24\nv_add_f32 v85, v22, v26")
    for i in range(2, 8):
        a("v_add_f32 v84, v84, v%d\nv_add_f32 v85, v85, v%d" % (20 + 4 * i, 22 + 4 * i))
    a("""s_lshl_b32 s4, s3, 9
s_add_u32 s4, s4, %d
v_lshlrev_b32 v86, 3, v1
v_add_u32 v86, s4, v86
ds_write_b64 v86, v[84:85]
s_waitcnt lgkmcnt(0)
s_barrier
s_cmp_lg_u32 s3, 0
s_cbranch_scc1 R_next
v_lshlrev_b32 v86, 3, v1
v_add_u32 v86, %d, v86
ds_read_b64 v[88:89], v86
ds_read_b64 v[90:91], v86 offset:512
ds_read_b64 v[92:93], v86 offset:1024
ds_read_b64 v[94:95], v86 offset:1536
s_waitcnt lgkmcnt(0)
v_add_f32 v88, v88, v90
v_add_f32 v89, v89, v91
v_add_f32 v88, v88, v92
v_add_f32 v89, v89, v93
v_add_f32 v88, v88, v94
v_add_f32 v89, v89, v95
v_cvt_pk_bf16_f32 v88, v88, v89
v_mov_b32 v89, s17
v_lshlrev_b32 v86, 3, v1
s_lshl_b32 s4, s2, 9
s_add_u32 s4, s4, 0x%x
buffer_store_dwordx2 v[88:89], v86, s[12:15], s4 offen sc1""" % (L_RED, L_RED, M2))
    a.label("R_next")
    a("s_add_u32 s16, s16, 1\ns_branch R_loop")
    a.label("rec_end")
    a("s_endpgm")
    kernels.append((name, 512, 256, 64))
    return name

def main():
    ref = open("cdna_kernels/%s.s.ref" % KNAME).read().split("\n")
    head = []
    for ln in ref:
        if ln.startswith("; @launch"):
            break
        head.append(ln)
    a = Asm()
    launches = []
    gen_prep(a);                                        launches.append(("prep_kernel", PREP_WGS, 0))
    gen_gemm(a, "qkv_kernel", 1536, 16, qkv_setup, qkv_epi); launches.append(("qkv_kernel", 1536, 0))
    gen_rec(a);                                         launches.append(("rec_kernel", 32, REC_LDS))
    gen_attn(a);                                        launches.append(("attn_kernel", 512, 0))
    gen_gemm(a, "wo_kernel", 256, 32, wo_setup, wo_epi); launches.append(("wo_kernel", 256, 0))
    gen_ln2(a);                                         launches.append(("ln2_kernel", 512, 0))
    gen_gemm(a, "gu_kernel", 448, 16, gu_setup, gu_epi); launches.append(("gu_kernel", 448, 0))
    gen_gemm(a, "dn_kernel", 64, 56, dn_setup, dn_epi); launches.append(("dn_kernel", 64, 0))
    out = list(head)
    for k, g, lds in launches:
        out.append("; @launch kernel=%s grid=(%d,1,1) block=(256,1,1) lds=%d" % (k, g, lds))
    out.append('.amdgcn_target "amdgcn-amd-amdhsa--gfx950"')
    out.append(".text")
    out += a.l
    out.append('.section .rodata,"a"')
    for (k, v, acc_off, s) in kernels:
        out.append(".p2align 6")
        out.append(""".amdhsa_kernel %s
  .amdhsa_next_free_vgpr %d
  .amdhsa_next_free_sgpr %d
  .amdhsa_accum_offset %d
  .amdhsa_group_segment_fixed_size 0
  .amdhsa_kernarg_size 112
  .amdhsa_user_sgpr_count 2
  .amdhsa_user_sgpr_kernarg_segment_ptr 1
  .amdhsa_system_sgpr_workgroup_id_x 1
.end_amdhsa_kernel""" % (k, v, s, acc_off))
    open("cdna_kernels/%s.s" % KNAME, "w").write("\n".join(out) + "\n")

if __name__ == "__main__":
    main()
```
